```python
import torch

def _softmax(x, axis=-1):
    return torch.softmax(x, dim=axis)
def _gelu(x):
    return torch.nn.functional.gelu(x, approximate="tanh")
def _silu(x):
    return torch.nn.functional.silu(x)
def _sigmoid(x):
    return torch.sigmoid(x)
def _layernorm(x, axis=-1, eps=1e-5):
    m = x.mean(dim=axis, keepdim=True)
    v = x.var(dim=axis, keepdim=True, unbiased=False)
    return (x - m) / torch.sqrt(v + eps)
def _scatter_add(tgt, idx, src, axis=0):
    return tgt.clone().index_add_(axis, idx, src)
def _segment_sum(src, seg, n):
    out = torch.zeros((n,) + src.shape[1:], dtype=src.dtype)
    return out.index_add_(0, seg, src)
def _pad(x, pw):
    flat = tuple(v for pair in reversed(pw) for v in pair)
    return torch.nn.functional.pad(x, flat)

kernel_name = 'concat_heads__gqa_block_cached__gqa_block_cached__near_ridge'

def setup_inputs():

    _w = (lambda a: (lambda t: t.to(torch.bfloat16) if t.is_floating_point() else t)(torch.as_tensor(a)))
    def _A_setup():
        B, Sq, D = 8, 128, 640
        Hq, Hkv, Sk, Dh = 32, 32, 512, 192
        assert Hq % Hkv == 0, (Hq, Hkv)
        return {
            "x": _w((lambda *s: torch.randn(*s, dtype=torch.bfloat16) * 0.8)(B, Sq, D)),
            "k_cache": _w((lambda *s: torch.randn(*s, dtype=torch.bfloat16) * 0.8)(B, Hkv, Sk, Dh)),
            "v_cache": _w((lambda *s: torch.randn(*s, dtype=torch.bfloat16) * 0.05)(B, Hkv, Sk, Dh)),
            "wq": _w((lambda *s: torch.randn(*s, dtype=torch.bfloat16) * 0.8)(D, Hq * Dh) * (D ** -0.5)),
            "wo": _w((lambda *s: torch.randn(*s, dtype=torch.bfloat16) * 0.05)(Hq * Dh, D) * ((Hq * Dh) ** -0.5)),
        }
    _A_in = _A_setup()

    def _B_setup():
        B, Sq, D = 8, 128, 640
        Hq, Hkv, Sk, Dh = 32, 32, 512, 192
        assert Hq % Hkv == 0, (Hq, Hkv)
        return {
            "x": _w((lambda *s: torch.randn(*s, dtype=torch.bfloat16) * 0.8)(B, Sq, D)),
            "k_cache": _w((lambda *s: torch.randn(*s, dtype=torch.bfloat16) * 0.8)(B, Hkv, Sk, Dh)),
            "v_cache": _w((lambda *s: torch.randn(*s, dtype=torch.bfloat16) * 0.05)(B, Hkv, Sk, Dh)),
            "wq": _w((lambda *s: torch.randn(*s, dtype=torch.bfloat16) * 0.8)(D, Hq * Dh) * (D ** -0.5)),
            "wo": _w((lambda *s: torch.randn(*s, dtype=torch.bfloat16) * 0.05)(Hq * Dh, D) * ((Hq * Dh) ** -0.5)),
        }
    _B_in = _B_setup()

    return {
        "A_x": _A_in["x"],
        "A_k_cache": _A_in["k_cache"],
        "A_v_cache": _A_in["v_cache"],
        "A_wq": _A_in["wq"],
        "A_wo": _A_in["wo"],
        "B_x": _B_in["x"],
        "B_k_cache": _B_in["k_cache"],
        "B_v_cache": _B_in["v_cache"],
        "B_wq": _B_in["wq"],
        "B_wo": _B_in["wo"],
    }

def reference(A_x, A_k_cache, A_v_cache, A_wq, A_wo, B_x, B_k_cache, B_v_cache, B_wq, B_wo):
    def _A_ref(x, k_cache, v_cache, wq, wo):
        B, Sq, D = x.shape
        Hq, Dh = 32, 192
        Hkv = k_cache.shape[1]
        rep = Hq // Hkv
        q = (lambda x, *d: x.permute(*d))((x @ wq).reshape(B, Sq, Hq, Dh), 0, 2, 1, 3)
        k = (lambda x, n, axis: torch.repeat_interleave(x, n, dim=axis))(k_cache, rep, axis=1)
        v = (lambda x, n, axis: torch.repeat_interleave(x, n, dim=axis))(v_cache, rep, axis=1)
        scores = torch.einsum("bhqd,bhkd->bhqk", q, k) * (Dh ** -0.5)
        p = _softmax(scores, axis=-1)
        o = torch.einsum("bhqk,bhkd->bhqd", p, v)
        return (lambda x, *d: x.permute(*d))(o, 0, 2, 1, 3).reshape(B, Sq, Hq * Dh) @ wo

    def _B_ref(x, k_cache, v_cache, wq, wo):
        B, Sq, D = x.shape
        Hq, Dh = 32, 192
        Hkv = k_cache.shape[1]
        rep = Hq // Hkv
        q = (lambda x, *d: x.permute(*d))((x @ wq).reshape(B, Sq, Hq, Dh), 0, 2, 1, 3)
        k = (lambda x, n, axis: torch.repeat_interleave(x, n, dim=axis))(k_cache, rep, axis=1)
        v = (lambda x, n, axis: torch.repeat_interleave(x, n, dim=axis))(v_cache, rep, axis=1)
        scores = torch.einsum("bhqd,bhkd->bhqk", q, k) * (Dh ** -0.5)
        p = _softmax(scores, axis=-1)
        o = torch.einsum("bhqk,bhkd->bhqd", p, v)
        return (lambda x, *d: x.permute(*d))(o, 0, 2, 1, 3).reshape(B, Sq, Hq * Dh) @ wo

    a = _A_ref(A_x, A_k_cache, A_v_cache, A_wq, A_wo)
    b = _B_ref(B_x, B_k_cache, B_v_cache, B_wq, B_wo)
    return torch.concatenate([a, b], axis=-1)
```

```python
import sys, math

NAME = "concat_heads__gqa_block_cached__gqa_block_cached__near_ridge"
OUT = "cdna_kernels/%s.s" % NAME

WS_O = 0
WS_SLAB = 32 << 20
WS_FLAG = 60 << 20

CFG = dict(kv_nt=True, prio=False)
for a in sys.argv[1:]:
    if "=" in a:
        k, v = a.split("=")
        if k == "out":
            OUT = v
        else:
            CFG[k] = int(v)


class G:
    def __init__(self):
        self.L = []
        self.q = []

    def e(self, s):
        self.L.append("    " + s)

    def lab(self, s):
        self.L.append(s + ":")

    def c(self, s):
        self.L.append("    ; " + s)

    def dsr(self, op, dst, n, addr, off):
        assert 0 <= off <= 65535, off
        self.e("%s v[%d:%d], v%d offset:%d" % (op, dst, dst + n - 1, addr, off))
        self.q.append(set(range(dst, dst + n)))

    def need(self, regs):
        regs = set(regs)
        last = -1
        for i, s in enumerate(self.q):
            if s & regs:
                last = i
        if last >= 0:
            n = len(self.q) - 1 - last
            self.e("s_waitcnt lgkmcnt(%d)" % min(n, 15))
            if n <= 15:
                self.q = self.q[last + 1:]
            else:
                self.q = self.q[len(self.q) - 15:]

    def drain(self):
        self.q = []

    def mfma(self, d, a, b, c):
        self.need(list(range(a, a + 4)) + list(range(b, b + 4)))
        cs = "0" if c is None else "v[%d:%d]" % (c, c + 15)
        self.e("v_mfma_f32_32x32x16_bf16 v[%d:%d], v[%d:%d], v[%d:%d], %s" % (d, d + 15, a, a + 3, b, b + 3, cs))


def interleave(g, mf, rd, per):
    ri = 0
    for i, m in enumerate(mf):
        m()
        k = per[i] if i < len(per) else 0
        for _ in range(k):
            if ri < len(rd):
                rd[ri]()
                ri += 1
    while ri < len(rd):
        rd[ri]()
        ri += 1


def srd(g, d, lo, hi, nrec):
    g.e("s_mov_b32 s%d, s%d" % (d, lo))
    g.e("s_and_b32 s%d, s%d, 0xffff" % (d + 1, hi))
    if isinstance(nrec, int):
        g.e("s_mov_b32 s%d, 0x%x" % (d + 2, nrec))
    else:
        g.e("s_mov_b32 s%d, %s" % (d + 2, nrec))
    g.e("s_mov_b32 s%d, 0x00020000" % (d + 3))


def kernel1():
    g = G()
    e = g.e
    ACC, QR, SA, SB, R0, R1 = 24, 120, 168, 184, 200, 224
    VLANE = 1
    DKV = [2, 3, 4]
    KB = [5, 6, 7, 8]
    VB = [9, 10, 11, 12]
    AD = [13, 14, 15, 16]
    VM, VL = 17, 18
    T0, T1, T2, T3 = 19, 20, 21, 22
    X0, X1 = 168, 172
    DWQ = [176, 177, 178]
    DX = [179, 180]
    WB = [181, 182, 183, 184]
    XB = [185, 186]
    WB2 = [187, 188, 189, 190]
    nt = " nt" if CFG["kv_nt"] else ""

    g.lab("attn_kernel")
    e("s_cmp_ge_u32 s2, 512")
    e("s_cbranch_scc1 L1_end")
    e("s_load_dwordx16 s[32:47], s[0:1], 0")
    e("s_load_dwordx4 s[48:51], s[0:1], 64")
    e("s_load_dwordx2 s[52:53], s[0:1], 96")
    e("s_and_b32 s54, s2, 7")
    e("s_lshr_b32 s55, s2, 3")
    e("s_lshr_b32 s56, s54, 2")
    e("s_and_b32 s57, s54, 3")
    e("s_lshl_b32 s57, s57, 3")
    e("s_and_b32 s58, s55, 7")
    e("s_add_u32 s57, s57, s58")
    e("s_lshr_b32 s58, s55, 3")
    e("v_and_b32 v%d, 63, v0" % VLANE)
    e("v_lshrrev_b32 v19, 6, v0")
    e("s_nop 0")
    e("v_readfirstlane_b32 s24, v19")
    e("s_nop 3")
    e("s_mul_i32 s25, s24, 3072")
    e("s_lshl_b32 s26, s24, 11")
    e("s_add_u32 s26, s26, 12288")
    for i in range(3):
        e("v_add_u32 v19, %d, v%d" % (64 * i, VLANE))
        e("v_mul_u32_u24 v20, 2731, v19")
        e("v_lshrrev_b32 v20, 16, v20")
        e("v_mul_u32_u24 v21, 24, v20")
        e("v_sub_u32 v21, v19, v21")
        e("s_lshl_b32 s59, s24, 3")
        e("v_add_u32 v20, s59, v20")
        e("v_lshrrev_b32 v22, 1, v20")
        e("v_and_b32 v22, 1, v22")
        e("v_lshlrev_b32 v22, 2, v22")
        e("v_bfe_u32 v23, v20, 2, 2")
        e("v_or_b32 v22, v22, v23")
        e("v_xor_b32 v21, v21, v22")
        e("v_lshlrev_b32 v21, 4, v21")
        e("v_mul_u32_u24 v22, 384, v20")
        e("v_add_u32 v%d, v22, v21" % DKV[i])
        e("v_mul_u32_u24 v22, 12288, v20")
        e("v_add_u32 v%d, v22, v21" % DWQ[i])
    e("v_lshrrev_b32 v19, 2, v%d" % VLANE)
    e("s_lshl_b32 s59, s24, 5")
    e("v_add_u32 v19, s59, v19")
    e("v_mul_u32_u24 v19, 1280, v19")
    e("v_and_b32 v20, 3, v%d" % VLANE)
    e("v_lshrrev_b32 v21, 4, v%d" % VLANE)
    e("v_xor_b32 v20, v20, v21")
    e("v_lshlrev_b32 v20, 4, v20")
    e("v_add_u32 v%d, v19, v20" % DX[0])
    e("v_add_u32 v%d, %d, v%d" % (DX[1], 16 * 1280, DX[0]))
    e("s_waitcnt lgkmcnt(0)")
    e("s_cmp_eq_u32 s56, 0")
    e("s_cselect_b64 s[60:61], s[32:33], s[42:43]")
    e("s_cselect_b64 s[62:63], s[34:35], s[44:45]")
    e("s_cselect_b64 s[64:65], s[36:37], s[46:47]")
    e("s_cselect_b64 s[66:67], s[38:39], s[48:49]")
    e("s_mul_i32 s59, s58, 163840")
    e("s_add_u32 s60, s60, s59")
    e("s_addc_u32 s61, s61, 0")
    srd(g, 4, 60, 61, 163840)
    e("s_mul_i32 s59, s57, 384")
    e("s_add_u32 s66, s66, s59")
    e("s_addc_u32 s67, s67, 0")
    e("s_sub_u32 s68, %d, s59" % (640 * 12288))
    srd(g, 8, 66, 67, "s68")

    def q_issue(stage_off_sgpr_or_imm, region):
        for i in range(3):
            e("s_add_u32 m0, s25, %d" % (region + 1024 * i))
            e("s_nop 0")
            e("buffer_load_dwordx4 v%d, s[8:11], s28 offen lds" % DWQ[i])
        for i in range(2):
            e("s_add_u32 m0, s26, %d" % (region + 1024 * i))
            e("s_nop 0")
            e("buffer_load_dwordx4 v%d, s[4:7], s29 offen lds" % DX[i])
        e("s_add_u32 s28, s28, %d" % (32 * 12288))
        e("s_add_u32 s29, s29, 64")

    e("s_mov_b32 s28, 0")
    e("s_mov_b32 s29, 0")
    for st in range(4):
        q_issue(None, st * 20480)
    e("s_lshl_b32 s59, s58, 5")
    e("s_add_u32 s59, s59, s57")
    e("s_mul_i32 s69, s59, 196608")
    e("s_add_u32 s62, s62, s69")
    e("s_addc_u32 s63, s63, 0")
    srd(g, 12, 62, 63, 196608)
    e("s_add_u32 s64, s64, s69")
    e("s_addc_u32 s65, s65, 0")
    srd(g, 16, 64, 65, 196608)
    e("s_lshl_b32 s59, s56, 3")
    e("s_add_u32 s59, s59, s58")
    e("s_lshl_b32 s59, s59, 2")
    e("s_add_u32 s59, s59, s24")
    e("s_lshl_b32 s59, s59, 5")
    e("s_add_u32 s59, s59, s57")
    e("s_mul_i32 s59, s59, 12288")
    e("s_add_u32 s70, s52, s59")
    e("s_addc_u32 s71, s53, 0")
    srd(g, 20, 70, 71, 12288)
    e("v_lshrrev_b32 v19, 5, v%d" % VLANE)
    e("v_and_b32 v20, 31, v%d" % VLANE)
    e("v_lshrrev_b32 v21, 1, v20")
    e("v_and_b32 v21, 1, v21")
    e("v_lshlrev_b32 v21, 2, v21")
    e("v_bfe_u32 v22, v20, 2, 2")
    e("v_or_b32 v21, v21, v22")
    e("v_xor_b32 v21, v21, v19")
    e("v_mul_u32_u24 v22, 384, v20")
    for k in range(4):
        e("v_xor_b32 v23, %d, v21" % (2 * k))
        e("v_lshl_add_u32 v%d, v23, 4, v22" % KB[k])
    e("v_bfe_u32 v21, v20, 2, 2")
    e("v_xor_b32 v21, v21, v19")
    e("v_lshlrev_b32 v22, 6, v20")
    e("v_add_u32 v22, s26, v22")
    for s in range(2):
        e("v_xor_b32 v23, %d, v21" % (2 * s))
        e("v_lshl_add_u32 v%d, v23, 4, v22" % XB[s])
    e("v_bfe_u32 v20, v%d, 2, 2" % VLANE)
    e("v_lshl_add_u32 v21, v19, 2, v20")
    e("v_mul_u32_u24 v21, 384, v21")
    e("v_and_b32 v22, 1, v%d" % VLANE)
    e("v_lshl_add_u32 v21, v22, 3, v21")
    e("v_bfe_u32 v22, v%d, 3, 1" % VLANE)
    e("v_lshlrev_b32 v22, 2, v22")
    e("v_bfe_u32 v23, v%d, 4, 1" % VLANE)
    e("v_lshl_or_b32 v22, v23, 1, v22")
    e("v_bfe_u32 v23, v%d, 1, 1" % VLANE)
    e("v_xor_b32 v23, v23, v19")
    e("v_or_b32 v22, v22, v23")
    for tp in range(2):
        for j in range(2):
            e("v_xor_b32 v23, %d, v22" % ((tp << 2) | (j << 1)))
            e("v_lshl_add_u32 v%d, v23, 4, v21" % VB[tp * 2 + j])
    e("v_lshl_add_u32 v21, v19, 3, v20")
    e("v_mul_u32_u24 v21, 384, v21")
    e("v_bfe_u32 v22, v%d, 1, 1" % VLANE)
    e("v_lshl_add_u32 v21, v22, 3, v21")
    e("v_bfe_u32 v22, v%d, 3, 1" % VLANE)
    e("v_lshlrev_b32 v22, 2, v22")
    e("v_bfe_u32 v23, v%d, 4, 1" % VLANE)
    e("v_xor_b32 v23, v23, v19")
    e("v_lshl_or_b32 v22, v23, 1, v22")
    e("v_and_b32 v23, 1, v%d" % VLANE)
    e("v_or_b32 v22, v22, v23")
    for tp in range(2):
        for j in range(2):
            e("v_xor_b32 v23, %d, v22" % ((tp << 2) | j))
            e("v_lshl_add_u32 v%d, v23, 4, v21" % WB[tp * 2 + j])
            e("v_add_u32 v%d, 40960, v%d" % (WB2[tp * 2 + j], WB[tp * 2 + j]))
    for i in range(96):
        e("v_mov_b32 v%d, 0" % (ACC + i))

    def q_reads(region, s, R, X):
        rd = [lambda: g.dsr("ds_read_b128", X, 4, XB[s], region)]
        for t in range(6):
            for j in range(2):
                rd.append(lambda t=t, j=j: g.dsr("ds_read_b64_tr_b16", R + 4 * t + 2 * j, 2,
                                                 (WB2 if region >= 40960 else WB)[(t % 2) * 2 + j],
                                                 region % 40960 + (16 * s + 4 * j) * 384 + (t // 2) * 128))
        return rd

    def k_reads(half, R):
        rd = []
        for o in range(6):
            s = 6 * half + o
            rd.append(lambda s=s, o=o: g.dsr("ds_read_b128", R + 4 * o, 4, AD[s % 4], (s // 4) * 128))
        return rd

    def v_reads(s, R):
        rd = []
        for t in range(6):
            for j in range(2):
                rd.append(lambda t=t, j=j: g.dsr("ds_read_b64_tr_b16", R + 4 * t + 2 * j, 2, AD[(t % 2) * 2 + j],
                                                 (16 * s + 8 * j) * 384 + (t // 2) * 128))
        return rd

    def q_mf(R, X):
        return [lambda t=t: g.mfma(ACC + 16 * t, R + 4 * t, X, ACC + 16 * t) for t in range(6)]

    def sync(n):
        e("s_waitcnt vmcnt(%d) lgkmcnt(0)" % n)
        g.drain()
        e("s_barrier")

    PER13 = [4, 3, 3, 3]
    PER12 = [3, 3, 3, 3]
    PER6 = [2, 2, 1, 1]

    def kv_issue_static(n):
        base = (n % 6) * 12288
        isv = (n % 4) >= 2
        off = (n // 4) * 24576 + (n % 2) * 12288
        e("s_mov_b32 s30, %d" % off)
        for i in range(3):
            e("s_add_u32 m0, s25, %d" % (base + 1024 * i))
            e("s_nop 0")
            e("buffer_load_dwordx4 v%d, s[%d:%d], s30 offen%s lds" % (DKV[i], 16 if isv else 12, 19 if isv else 15, nt))

    sync(15)
    for r in q_reads(0, 0, R0, X0):
        r()
    qstate = list(g.q)

    def q_step(region, nxt_region, n_wait, issue, nxt_reads):
        interleave(g, q_mf(R0, X0), q_reads(region, 1, R1, X1), PER13)
        sync(n_wait)
        issue()
        interleave(g, q_mf(R1, X1), nxt_reads, PER13)

    e("s_mov_b32 s31, 0")
    g.lab("L1_qloop")
    g.q = list(qstate)
    for u in range(4):
        q_step(u * 20480, ((u + 1) % 4) * 20480, 10, lambda u=u: q_issue(None, u * 20480),
               q_reads(((u + 1) % 4) * 20480, 0, R0, X0))
    e("s_add_u32 s31, s31, 1")
    e("s_cmp_lt_u32 s31, 4")
    e("s_cbranch_scc1 L1_qloop")
    g.q = list(qstate)
    q_step(0, 20480, 10, lambda: kv_issue_static(0), q_reads(20480, 0, R0, X0))
    q_step(20480, 40960, 8, lambda: (kv_issue_static(1), kv_issue_static(2)), q_reads(40960, 0, R0, X0))
    q_step(40960, 61440, 9, lambda: (kv_issue_static(3), kv_issue_static(4)), q_reads(61440, 0, R0, X0))

    def last_issue():
        kv_issue_static(5)
        for k in range(4):
            e("v_mov_b32 v%d, v%d" % (AD[k], KB[k]))
    interleave(g, q_mf(R0, X0), q_reads(61440, 1, R1, X1), PER13)
    sync(12)
    last_issue()
    interleave(g, q_mf(R1, X1), k_reads(0, R0), PER6)
    kstate = list(g.q)
    e("s_nop 7")
    e("s_nop 7")
    for t in range(6):
        for i in range(8):
            e("v_cvt_pk_bf16_f32 v%d, v%d, v%d" % (QR + 8 * t + i, ACC + 16 * t + 2 * i, ACC + 16 * t + 2 * i + 1))
    for i in range(96):
        e("v_mov_b32 v%d, 0" % (ACC + i))
    e("v_mov_b32 v%d, 0xff800000" % VM)
    e("v_mov_b32 v%d, 0" % VL)
    cscale = math.log2(math.e) / math.sqrt(192.0)
    import struct
    e("s_mov_b32 s40, 0x%08x" % struct.unpack("<I", struct.pack("<f", cscale))[0])
    e("s_mov_b32 s41, 0")
    e("s_mov_b32 s42, 24576")
    e("s_mov_b32 s43, 49152")
    e("s_mov_b32 s31, 0")

    def kv_mid(fill_is_v, nxt_is_v):
        sync(12)
        e("s_add_u32 s44, s41, s25")
        so = 42 if fill_is_v else 43
        for i in range(3):
            e("s_add_u32 m0, s44, %d" % (1024 * i))
            if i == 0:
                e("s_add_u32 s41, s41, 12288")
            elif i == 1:
                e("s_nop 0")
            else:
                e("s_cmp_eq_u32 s41, 73728")
            e("buffer_load_dwordx4 v%d, s[%d:%d], s%d offen%s lds" % (DKV[i], 16 if fill_is_v else 12, 19 if fill_is_v else 15, so, nt))
        e("s_cselect_b32 s41, 0, s41")
        e("s_add_u32 s%d, s%d, 12288" % (so, so))
        B = VB if nxt_is_v else KB
        for k in range(4):
            e("v_add_u32 v%d, s41, v%d" % (AD[k], B[k]))

    def k_mf(S, half, R):
        return [lambda o=o: g.mfma(S, R + 4 * o, QR + 4 * (6 * half + o), None if (half == 0 and o == 0) else S)
                for o in range(6)]

    def v_mf(P, s, R):
        return [lambda t=t: g.mfma(ACC + 16 * t, R + 4 * t, P + 4 * s, ACC + 16 * t) for t in range(6)]

    g.lab("L1_aloop")
    g.q = list(kstate)
    interleave(g, k_mf(SA, 0, R0), k_reads(1, R1), PER6)
    kv_mid(True, False)
    interleave(g, k_mf(SA, 1, R1), k_reads(0, R0), PER6)
    interleave(g, k_mf(SB, 0, R0), k_reads(1, R1), PER6)
    kv_mid(True, True)
    interleave(g, k_mf(SB, 1, R1), v_reads(0, R0), PER12)
    e("v_max3_f32 v%d, v%d, v%d, v%d" % (T0, SA, SA + 1, SA + 2))
    for i in range(3, 15, 2):
        e("v_max3_f32 v%d, v%d, v%d, v%d" % (T0, T0, SA + i, SA + i + 1))
    e("v_max3_f32 v%d, v%d, v%d, v%d" % (T0, T0, SA + 15, VM))
    e("s_nop 4")
    for i in range(0, 16, 2):
        e("v_max3_f32 v%d, v%d, v%d, v%d" % (T0, T0, SB + i, SB + i + 1))
    e("v_mov_b32 v%d, v%d" % (T3, T0))
    e("s_nop 1")
    e("v_permlane32_swap_b32 v%d, v%d" % (T0, T3))
    e("v_max_f32 v%d, v%d, v%d" % (T0, T0, T3))
    e("v_sub_f32 v%d, v%d, v%d" % (T1, VM, T0))
    e("v_mul_f32 v%d, s40, v%d" % (T1, T1))
    e("v_exp_f32 v%d, v%d" % (T1, T1))
    e("v_mov_b32 v%d, v%d" % (VM, T0))
    e("v_mul_f32 v%d, s40, v%d" % (T0, T0))
    e("v_mov_b32 v%d, v%d" % (T2, T1))
    e("v_mul_f32 v%d, v%d, v%d" % (VL, VL, T1))
    for S in (SA, SB):
        for i in range(16):
            e("v_fma_f32 v%d, v%d, s40, -v%d" % (S + i, S + i, T0))
        for i in range(16):
            e("v_exp_f32 v%d, v%d" % (S + i, S + i))
            if i >= 1:
                e("v_pk_mul_f32 v[%d:%d], v[%d:%d], v[%d:%d]" % tuple(
                    [ACC + (0 if S == SA else 48) + 2 * (i - 1), ACC + (0 if S == SA else 48) + 2 * (i - 1) + 1] * 2 + [T1, T2]))
        for i in range(15, 24):
            e("v_pk_mul_f32 v[%d:%d], v[%d:%d], v[%d:%d]" % tuple(
                [ACC + (0 if S == SA else 48) + 2 * i, ACC + (0 if S == SA else 48) + 2 * i + 1] * 2 + [T1, T2]))
        e("v_add_f32 v%d, v%d, v%d" % (T3, S, S + 1))
        for i in range(2, 16):
            e("v_add_f32 v%d, v%d, v%d" % (T3, T3, S + i))
        e("v_add_f32 v%d, v%d, v%d" % (VL, VL, T3))
        for i in range(8):
            e("v_cvt_pk_bf16_f32 v%d, v%d, v%d" % (S + i, S + 2 * i, S + 2 * i + 1))
    e("s_nop 1")
    interleave(g, v_mf(SA, 0, R0), v_reads(1, R1), PER12)
    kv_mid(False, True)
    interleave(g, v_mf(SA, 1, R1), v_reads(0, R0), PER12)
    interleave(g, v_mf(SB, 0, R0), v_reads(1, R1), PER12)
    kv_mid(False, False)
    interleave(g, v_mf(SB, 1, R1), k_reads(0, R0), PER6)
    assert [sorted(x) for x in g.q] == [sorted(x) for x in kstate] or len(g.q) <= len(kstate)
    e("s_add_u32 s31, s31, 1")
    e("s_cmp_lt_u32 s31, 8")
    e("s_cbranch_scc1 L1_aloop")
    e("v_mov_b32 v%d, v%d" % (T3, VL))
    e("s_nop 1")
    e("v_permlane32_swap_b32 v%d, v%d" % (VL, T3))
    e("v_add_f32 v%d, v%d, v%d" % (VL, VL, T3))
    e("v_rcp_f32 v%d, v%d" % (T1, VL))
    e("v_lshlrev_b32 v%d, 4, v%d" % (T0, VLANE))
    e("s_nop 7")
    e("v_mov_b32 v%d, v%d" % (T2, T1))
    e("s_mov_b32 s44, 0")
    for fr in range(12):
        b = ACC + 8 * fr
        for i in range(4):
            e("v_pk_mul_f32 v[%d:%d], v[%d:%d], v[%d:%d]" % (b + 2 * i, b + 2 * i + 1, b + 2 * i, b + 2 * i + 1, T1, T2))
        d = QR + 4 * fr
        for i in range(4):
            e("v_cvt_pk_bf16_f32 v%d, v%d, v%d" % (d + i, b + 2 * i, b + 2 * i + 1))
        if fr % 4 == 0 and fr:
            e("s_add_u32 s44, s44, 4096")
        e("buffer_store_dwordx4 v[%d:%d], v%d, s[20:23], s44 offen offset:%d" % (d, d + 3, T0, (fr % 4) * 1024))
    e("s_cmp_ge_u32 s2, 256")
    e("s_cbranch_scc1 L1_fin")
    e("s_cmp_lg_u32 s24, 0")
    e("s_cbranch_scc1 L1_fin")
    e("s_add_u32 s70, s52, 0x%x" % WS_FLAG)
    e("s_addc_u32 s71, s53, 0")
    srd(g, 72, 70, 71, 32768)
    e("s_lshl_b32 s44, s2, 7")
    e("v_lshlrev_b32 v%d, 2, v%d" % (T0, VLANE))
    e("v_mov_b32 v%d, 0" % T3)
    e("v_cmp_gt_u32 vcc, 32, v%d" % VLANE)
    e("s_and_saveexec_b64 s[76:77], vcc")
    e("buffer_store_dword v%d, v%d, s[72:75], s44 offen" % (T3, T0))
    g.lab("L1_fin")
    e("s_waitcnt vmcnt(0) lgkmcnt(0)")
    g.lab("L1_end")
    e("s_endpgm")
    return g.L


def kernel2():
    g = G()
    e = g.e
    D = 6
    SLOT = 20480
    ACC, R0, R1, FR = 16, 96, 136, 176
    FD = 5
    VLANE = 1
    DW = [2, 3, 4, 5, 6]
    RB = [7, 8]
    VF = 9
    g.lab("oproj_kernel")
    e("s_cmp_ge_u32 s2, 256")
    e("s_cbranch_scc1 L2_end")
    e("s_load_dwordx2 s[32:33], s[0:1], 32")
    e("s_load_dwordx2 s[34:35], s[0:1], 72")
    e("s_load_dwordx2 s[36:37], s[0:1], 80")
    e("s_load_dwordx2 s[38:39], s[0:1], 96")
    e("s_and_b32 s54, s2, 7")
    e("s_lshr_b32 s55, s2, 3")
    e("s_lshr_b32 s56, s54, 2")
    e("s_and_b32 s57, s54, 3")
    e("s_lshr_b32 s58, s55, 2")
    e("s_and_b32 s59, s55, 3")
    e("v_and_b32 v%d, 63, v0" % VLANE)
    e("v_lshrrev_b32 v10, 6, v0")
    e("s_nop 0")
    e("v_readfirstlane_b32 s24, v10")
    e("s_nop 3")
    e("s_mul_i32 s25, s24, 5120")
    e("s_mul_i32 s60, s24, 320")
    for i in range(5):
        e("v_add_u32 v10, %d, v%d" % (64 * i, VLANE))
        e("v_add_u32 v10, s60, v10")
        e("v_mul_u32_u24 v11, 3277, v10")
        e("v_lshrrev_b32 v11, 16, v11")
        e("v_mul_u32_u24 v12, 20, v11")
        e("v_sub_u32 v12, v10, v12")
        e("v_mul_u32_u24 v11, 1280, v11")
        e("v_lshl_add_u32 v%d, v12, 4, v11" % DW[i])
    e("v_lshlrev_b32 v%d, 4, v%d" % (VF, VLANE))
    e("s_waitcnt lgkmcnt(0)")
    e("s_cmp_eq_u32 s56, 0")
    e("s_cselect_b64 s[62:63], s[32:33], s[34:35]")
    e("s_mul_i32 s60, s57, %d" % (1536 * 1280))
    e("s_mul_i32 s61, s59, 320")
    e("s_add_u32 s60, s60, s61")
    e("s_add_u32 s62, s62, s60")
    e("s_addc_u32 s63, s63, 0")
    e("s_sub_u32 s64, %d, s61" % (1536 * 1280))
    srd(g, 4, 62, 63, "s64")
    e("s_lshl_b32 s60, s56, 3")
    e("s_add_u32 s60, s60, s58")
    e("s_lshl_b32 s60, s60, 2")
    e("s_add_u32 s60, s60, s24")
    e("s_lshl_b32 s60, s60, 2")
    e("s_add_u32 s60, s60, s57")
    e("s_mul_i32 s60, s60, 98304")
    e("s_add_u32 s66, s38, s60")
    e("s_addc_u32 s67, s39, 0")
    srd(g, 8, 66, 67, 98304)
    e("s_mov_b32 s28, 0")
    e("s_mov_b32 s29, 0")

    def w_issue(slot):
        for i in range(5):
            e("s_add_u32 m0, s25, %d" % (slot * SLOT + 1024 * i))
            e("s_nop 0")
            e("buffer_load_dwordx4 v%d, s[4:7], s28 offen lds" % DW[i])
        e("s_add_u32 s28, s28, %d" % (64 * 1280))

    def f_issue(fs):
        for i in range(4):
            d = FR + 16 * fs + 4 * i
            e("buffer_load_dwordx4 v[%d:%d], v%d, s[8:11], s29 offen offset:%d" % (d, d + 3, VF, 1024 * i))
        e("s_add_u32 s29, s29, 4096")

    assert D == FD + 1
    for st in range(FD):
        w_issue(st)
        f_issue(st)
    w_issue(FD)
    e("v_lshrrev_b32 v10, 5, v%d" % VLANE)
    e("v_bfe_u32 v11, v%d, 2, 2" % VLANE)
    e("v_lshl_add_u32 v10, v10, 2, v11")
    e("v_mul_u32_u24 v10, 320, v10")
    e("v_bfe_u32 v11, v%d, 4, 1" % VLANE)
    e("v_lshl_add_u32 v10, v11, 5, v10")
    e("v_and_b32 v11, 1, v%d" % VLANE)
    e("v_lshl_add_u32 v10, v11, 4, v10")
    e("v_bfe_u32 v11, v%d, 1, 1" % VLANE)
    e("v_lshl_add_u32 v%d, v11, 3, v10" % RB[0])
    e("v_add_u32 v%d, %d, v%d" % (RB[1], 3 * SLOT, RB[0]))
    for i in range(80):
        e("v_mov_b32 v%d, 0" % (ACC + i))

    def reads(slot, half, R):
        rd = []
        rb = RB[slot // 3]
        so = (slot % 3) * SLOT
        for s2 in range(2):
            s = 2 * half + s2
            for t in range(5):
                for j in range(2):
                    rd.append(lambda s=s, s2=s2, t=t, j=j: g.dsr("ds_read_b64_tr_b16", R + 20 * s2 + 4 * t + 2 * j, 2, rb,
                                                                 so + (16 * s + 8 * j) * 320 + 64 * t))
        return rd

    def mf(fs, half, R):
        out = []
        for s2 in range(2):
            for t in range(5):
                out.append(lambda s2=s2, t=t: g.mfma(ACC + 16 * t, R + 20 * s2 + 4 * t, FR + 16 * fs + 4 * (2 * half + s2), ACC + 16 * t))
        return out

    PER = [3, 3, 3, 3, 2, 2, 2, 2]
    e("s_waitcnt vmcnt(41)")
    e("s_barrier")
    for r in reads(0, 0, R0):
        r()
    st0 = list(g.q)
    for st in range(24):
        interleave(g, mf(st % FD, 0, R0), reads(st % D, 1, R1), PER)
        if st < 23:
            order = []
            for k in range(FD):
                order += [("W", k)] * 5 + [("F", k)] * 4
            order += [("W", FD)] * 5
            for k in range(st):
                if k + D < 24:
                    order += [("W", k + D)] * 5
                if k + FD < 24:
                    order += [("F", k + FD)] * 4
            last = max(i for i, o in enumerate(order) if o in (("W", st + 1), ("F", st + 1)))
            n = len(order) - 1 - last
            e("s_waitcnt vmcnt(%d) lgkmcnt(0)" % n)
            g.drain()
            e("s_barrier")
            if st + D < 24:
                w_issue(st % D)
            interleave(g, mf(st % FD, 1, R1), reads((st + 1) % D, 0, R0), PER)
            if st + FD < 24:
                f_issue(st % FD)
        else:
            interleave(g, mf(st % FD, 1, R1), [], PER)
    e("s_lshl_b32 s60, s56, 3")
    e("s_add_u32 s60, s60, s58")
    e("s_lshl_b32 s60, s60, 2")
    e("s_add_u32 s60, s60, s59")
    e("s_lshl_b32 s61, s60, 2")
    e("s_add_u32 s61, s61, s24")
    e("s_mul_i32 s61, s61, 81920")
    e("s_add_u32 s61, s61, 0x%x" % WS_SLAB)
    e("s_add_u32 s66, s38, s61")
    e("s_addc_u32 s67, s39, 0")
    srd(g, 12, 66, 67, 81920)
    e("s_mul_i32 s44, s57, 5120")
    e("s_add_u32 s66, s38, 0x%x" % WS_FLAG)
    e("s_addc_u32 s67, s39, 0")
    srd(g, 16, 66, 67, 32768)
    e("s_nop 7")
    for og in range(4):
        for t in range(5):
            a = ACC + 16 * t + 4 * og
            if t == 4:
                e("s_add_u32 s45, s44, 4096")
                e("buffer_store_dwordx4 v[%d:%d], v%d, s[12:15], s45 offen sc1" % (a, a + 3, VF))
            else:
                e("buffer_store_dwordx4 v[%d:%d], v%d, s[12:15], s44 offen offset:%d sc1" % (a, a + 3, VF, 1024 * t))
        e("s_add_u32 s44, s44, 20480")
    e("s_waitcnt vmcnt(0)")
    e("s_barrier")
    e("s_lshl_b32 s46, s60, 9")
    e("s_cmp_lg_u32 s24, 0")
    e("s_cbranch_scc1 L2_poll0")
    e("s_lshl_b32 s47, s57, 7")
    e("s_add_u32 s47, s47, s46")
    e("v_mov_b32 v10, 1")
    e("v_mov_b32 v11, 0")
    e("s_mov_b64 s[48:49], exec")
    e("s_mov_b64 exec, 1")
    e("buffer_store_dword v10, v11, s[16:19], s47 offen sc1")
    e("s_mov_b64 exec, s[48:49]")
    g.lab("L2_poll0")
    e("v_and_b32 v11, 3, v%d" % VLANE)
    e("v_lshlrev_b32 v11, 7, v11")
    e("s_mov_b32 s50, 0")
    g.lab("L2_poll")
    e("buffer_load_dword v10, v11, s[16:19], s46 offen sc1")
    e("s_add_u32 s50, s50, 1")
    e("s_waitcnt vmcnt(0)")
    e("v_cmp_ne_u32 vcc, 1, v10")
    e("s_cmp_gt_u32 s50, 0x200000")
    e("s_cbranch_scc1 L2_go")
    e("s_cbranch_vccz L2_go")
    e("s_sleep 2")
    e("s_branch L2_poll")
    g.lab("L2_go")
    e("s_mul_i32 s44, s57, 20480")
    for src in range(4):
        for t in range(5):
            d = R0 + 20 * src + 4 * t
            if t == 4:
                e("s_add_u32 s45, s44, 4096")
                e("buffer_load_dwordx4 v[%d:%d], v%d, s[12:15], s45 offen sc1" % (d, d + 3, VF))
            else:
                e("buffer_load_dwordx4 v[%d:%d], v%d, s[12:15], s44 offen offset:%d sc1" % (d, d + 3, VF, 1024 * t))
        e("s_add_u32 s44, s44, 5120")
    srd(g, 20, 36, 37, 8 * 128 * 1280 * 2)
    e("s_lshl_b32 s44, s58, 7")
    e("s_lshl_b32 s45, s24, 5")
    e("s_add_u32 s44, s44, s45")
    e("s_mul_i32 s44, s44, 2560")
    e("s_mul_i32 s45, s56, 1280")
    e("s_add_u32 s44, s44, s45")
    e("s_mul_i32 s45, s59, 320")
    e("s_add_u32 s44, s44, s45")
    e("s_lshr_b32 s45, s57, 1")
    e("s_lshl_b32 s45, s45, 5")
    e("s_add_u32 s44, s44, s45")
    e("s_and_b32 s45, s57, 1")
    e("s_lshl_b32 s45, s45, 3")
    e("s_add_u32 s44, s44, s45")
    e("v_and_b32 v10, 31, v%d" % VLANE)
    e("v_mul_u32_u24 v10, 2560, v10")
    e("v_lshrrev_b32 v11, 5, v%d" % VLANE)
    e("v_lshl_add_u32 v10, v11, 4, v10")
    e("s_waitcnt vmcnt(0)")
    for t in range(5):
        for i in range(4):
            a = R0 + 4 * t + i
            e("v_add_f32 v%d, v%d, v%d" % (a, a, a + 20))
            e("v_add_f32 v%d, v%d, v%d" % (a + 40, a + 40, a + 60))
        for i in range(4):
            a = R0 + 4 * t + i
            e("v_add_f32 v%d, v%d, v%d" % (a, a, a + 40))
        a = R0 + 4 * t
        e("v_cvt_pk_bf16_f32 v%d, v%d, v%d" % (ACC + 2 * t, a, a + 1))
        e("v_cvt_pk_bf16_f32 v%d, v%d, v%d" % (ACC + 2 * t + 1, a + 2, a + 3))
        e("buffer_store_dwordx2 v[%d:%d], v10, s[20:23], s44 offen offset:%d" % (ACC + 2 * t, ACC + 2 * t + 1, 64 * t))
    e("s_waitcnt vmcnt(0)")
    g.lab("L2_end")
    e("s_endpgm")
    return g.L


def desc(name, vgpr, sgpr=102):
    acc = (vgpr + 3) // 4 * 4
    return """.amdhsa_kernel %s
  .amdhsa_next_free_vgpr %d
  .amdhsa_next_free_sgpr %d
  .amdhsa_accum_offset %d
  .amdhsa_group_segment_fixed_size 0
  .amdhsa_kernarg_size 104
  .amdhsa_user_sgpr_count 2
  .amdhsa_user_sgpr_kernarg_segment_ptr 1
  .amdhsa_system_sgpr_workgroup_id_x 1
.end_amdhsa_kernel
""" % (name, vgpr, sgpr, acc)


def main():
    hdr = open("cdna_kernels/%s.s.ref" % NAME).read().split("; Override launch")[0]
    out = hdr
    out += "; @launch kernel=attn_kernel grid=(512,1,1) block=(256,1,1) lds=81920\n"
    out += "; @launch kernel=oproj_kernel grid=(256,1,1) block=(256,1,1) lds=122880\n"
    out += '.amdgcn_target "amdgcn-amd-amdhsa--gfx950"\n.text\n'
    for name, body in (("attn_kernel", kernel1()), ("oproj_kernel", kernel2())):
        out += ".globl %s\n.p2align 8\n.type %s,@function\n" % (name, name)
        out += "\n".join(body) + "\n"
    out += '.section .rodata,"a"\n.p2align 6\n'
    out += desc("attn_kernel", 256, 80)
    out += ".p2align 6\n"
    out += desc("oproj_kernel", 256, 80)
    open(OUT, "w").write(out)


main()
```
